```python
import torch

def _softmax(x, axis=-1):
    return torch.softmax(x, dim=axis)
def _gelu(x):
    return torch.nn.functional.gelu(x, approximate="tanh")
def _silu(x):
    return torch.nn.functional.silu(x)
def _sigmoid(x):
    return torch.sigmoid(x)
def _layernorm(x, axis=-1, eps=1e-5):
    m = x.mean(dim=axis, keepdim=True)
    v = x.var(dim=axis, keepdim=True, unbiased=False)
    return (x - m) / torch.sqrt(v + eps)
def _scatter_add(tgt, idx, src, axis=0):
    return tgt.clone().index_add_(axis, idx, src)
def _segment_sum(src, seg, n):
    out = torch.zeros((n,) + src.shape[1:], dtype=src.dtype)
    return out.index_add_(0, seg, src)
def _pad(x, pw):
    flat = tuple(v for pair in reversed(pw) for v in pair)
    return torch.nn.functional.pad(x, flat)

kernel_name = 'sequential_preLN__sliding_block_cached__glu_gated_swiglu__decode'

def setup_inputs():

    _w = (lambda a: (lambda t: t.to(torch.bfloat16) if t.is_floating_point() else t)(torch.as_tensor(a)))
    def _A_setup():
        B, Sq, D = 1, 1, 512
        Hq, Hkv, Sk, Dh = 32, 8, 32768, 128
        assert Hq % Hkv == 0, (Hq, Hkv)
        return {
            "x": _w((lambda *s: torch.randn(*s, dtype=torch.bfloat16) * 0.05)(B, Sq, D)),
            "k_cache": _w((lambda *s: torch.randn(*s, dtype=torch.bfloat16) * 1.6)(B, Hkv, Sk, Dh)),
            "v_cache": _w((lambda *s: torch.randn(*s, dtype=torch.bfloat16) * 0.8)(B, Hkv, Sk, Dh)),
            "wq": _w((lambda *s: torch.randn(*s, dtype=torch.bfloat16) * 1.6)(D, Hq * Dh) * (D ** -0.5)),
            "wo": _w((lambda *s: torch.randn(*s, dtype=torch.bfloat16) * 0.8)(Hq * Dh, D) * ((Hq * Dh) ** -0.5)),
        }
    _A_in = _A_setup()

    def _B_setup():
        B, S, D, F = 1, 1, 512, 1792
        return {
            "x": _w((lambda *s: torch.randn(*s, dtype=torch.bfloat16) * 0.05)(B, S, D)),
            "w1": _w((lambda *s: torch.randn(*s, dtype=torch.bfloat16) * 0.4)(D, F) * (2.0 / D) ** 0.5),
            "w3": _w((lambda *s: torch.randn(*s, dtype=torch.bfloat16) * 0.4)(D, F) * (2.0 / D) ** 0.5),
            "w2": _w((lambda *s: torch.randn(*s, dtype=torch.bfloat16) * 0.4)(F, D) * (2.0 / F) ** 0.5),
        }
    _B_in = _B_setup()

    return {
        "A_x": _A_in["x"],
        "A_k_cache": _A_in["k_cache"],
        "A_v_cache": _A_in["v_cache"],
        "A_wq": _A_in["wq"],
        "A_wo": _A_in["wo"],
        "B_x": _B_in["x"],
        "B_w1": _B_in["w1"],
        "B_w3": _B_in["w3"],
        "B_w2": _B_in["w2"],
    }

def reference(A_x, A_k_cache, A_v_cache, A_wq, A_wo, B_x, B_w1, B_w3, B_w2):
    def _A_ref(x, k_cache, v_cache, wq, wo):
        B, Sq, D = x.shape
        Hq, Dh = 32, 128
        Hkv, Sk = k_cache.shape[1], k_cache.shape[2]
        W = min(4096, max(256, Sk // 4))
        rep = Hq // Hkv
        q = (lambda x, *d: x.permute(*d))((x @ wq).reshape(B, Sq, Hq, Dh), 0, 2, 1, 3)
        k = (lambda x, n, axis: torch.repeat_interleave(x, n, dim=axis))(k_cache[:, :, Sk - W:, :], rep, axis=1)
        v = (lambda x, n, axis: torch.repeat_interleave(x, n, dim=axis))(v_cache[:, :, Sk - W:, :], rep, axis=1)
        scores = torch.einsum("bhqd,bhkd->bhqk", q, k) * (Dh ** -0.5)
        p = _softmax(scores, axis=-1)
        o = torch.einsum("bhqk,bhkd->bhqd", p, v)
        return (lambda x, *d: x.permute(*d))(o, 0, 2, 1, 3).reshape(B, Sq, Hq * Dh) @ wo

    def _B_ref(x, w1, w3, w2):
        gate = torch.einsum("bsd,df->bsf", x, w1)
        up = torch.einsum("bsd,df->bsf", x, w3)
        h = _silu(gate) * up
        out = torch.einsum("bsf,fd->bsd", h, w2)
        return out

    x = A_x
    h = x + _A_ref(_layernorm(x, axis=-1), A_k_cache, A_v_cache, A_wq, A_wo)
    h2 = h + _B_ref(_layernorm(h, axis=-1), B_w1, B_w3, B_w2)
    return h2
```

```python
import re

def regs(tok):
    tok = tok.strip()
    m = re.fullmatch(r"-?(?:abs\()?([vsa])(\d+)\)?", tok)
    if m: return [(m.group(1), int(m.group(2)))]
    m = re.fullmatch(r"([vsa])\[(\d+):(\d+)\]", tok)
    if m: return [(m.group(1), i) for i in range(int(m.group(2)), int(m.group(3)) + 1)]
    if tok == "vcc": return [("s", "vcc")]
    if tok == "exec": return [("s", "exec")]
    if tok == "m0": return [("s", "m0")]
    return []

TRANS = ("v_exp_f32", "v_log_f32", "v_rcp_f32", "v_rsq_f32", "v_sqrt_f32")

class I:
    def __init__(self, text):
        self.text = text
        t = text.split(";")[0].strip()
        parts = t.split(None, 1)
        self.op = parts[0]
        ops = []
        if len(parts) > 1:
            rest = parts[1]
            ops = [x.strip() for x in re.split(r",(?![^\[]*\])", rest)]
            last = ops[-1].split()
            self.mods = last[1:] if last else []
            if last: ops[-1] = last[0]
        else:
            self.mods = []
        self.ops = ops
        op = self.op
        self.valu = op.startswith("v_") and not op.startswith("v_mfma")
        self.mfma = op.startswith("v_mfma")
        self.vmem = op.startswith("buffer_") or op.startswith("global_")
        self.ds = op.startswith("ds_")
        self.salu = op.startswith("s_")
        self.dpp = "_dpp" in op or any(m.startswith(("row_", "quad_perm")) for m in self.mods)
        self.permlane = op.startswith("v_permlane")
        self.trans = op.replace("_e32", "").replace("_e64", "") in TRANS
        self.wr = []; self.rd = []
        R = lambda i: regs(ops[i]) if i < len(ops) else []
        allr = lambda a: [r for i in range(a, len(ops)) for r in R(i)]
        if self.mfma:
            self.wr = R(0); self.srcA = R(1); self.srcB = R(2); self.srcC = R(3); self.rd = allr(1)
        elif self.permlane:
            self.wr = R(0) + R(1); self.rd = R(0) + R(1)
        elif op.startswith("v_cmp"):
            self.wr = R(0); self.rd = allr(1)
        elif op.startswith(("v_readfirstlane", "v_readlane")):
            self.wr = R(0); self.rd = allr(1)
        elif op.startswith("v_writelane"):
            self.wr = R(0); self.rd = allr(0)
        elif self.valu:
            self.wr = R(0); self.rd = allr(1)
            if op.startswith(("v_fmac", "v_dot2c")) or self.dpp: self.rd += R(0)
            if op.startswith("v_cndmask") and len(ops) == 3: self.rd += [("s", "vcc")]
        elif self.vmem:
            if "load" in op and "lds" not in self.mods and "_lds" not in op:
                self.wr = R(0); self.rd = allr(1)
            else:
                self.rd = allr(0)
                if "lds" in self.mods or "_lds" in op: self.rd += [("s", "m0")]
            self.store_wide = ("store" in op and ("x4" in op or "x3" in op))
            self.data = R(0) if "store" in op else []
        elif self.ds:
            if "read" in op or "bpermute" in op or "swizzle" in op:
                self.wr = R(0); self.rd = allr(1)
            else:
                self.rd = allr(0)
        elif self.salu:
            if op.startswith(("s_cmp", "s_cbranch", "s_branch", "s_waitcnt", "s_nop", "s_barrier", "s_endpgm", "s_setprio", "s_sleep", "s_setpc", "s_bitcmp")):
                self.rd = allr(0)
            else:
                self.wr = R(0); self.rd = allr(1)
                if "saveexec" in op: self.wr += [("s", "exec")]
        self.states = 1
        if op == "s_nop": self.states = int(ops[0], 0) + 1

def check(lines):
    ins = []
    for ln in lines:
        t = ln.split(";")[0].strip()
        if not t or t.endswith(":") or t.startswith("."): continue
        ins.append(I(t))
    probs = []
    n = len(ins)
    for i, p in enumerate(ins):
        dist = 0
        for k in range(i + 1, min(n, i + 24)):
            c = ins[k]
            need = 0; why = ""
            pw = set(p.wr);
            def hit(lst): return bool(pw & set(lst))
            vw = {r for r in pw if r[0] in "va"}; sw = {r for r in pw if r[0] == "s"}
            if p.valu:
                if c.mfma and vw & set(c.rd): need, why = 2, "valu->mfma"
                if c.valu and c.dpp and vw & set(c.rd): need, why = max(need, 2), "valu->dpp"
                if c.permlane and vw & set(c.rd): need, why = max(need, 2), "valu->permlane"
                if c.op.startswith(("v_readfirstlane", "v_readlane")) and vw & set(c.rd): need, why = max(need, 1), "valu->readlane"
                if p.trans and c.valu and not c.trans and vw & set(c.rd): need, why = max(need, 1), "trans->valu"
                if p.trans and c.mfma and vw & set(c.rd): need, why = max(need, 2), "trans->mfma"
                if sw:
                    if c.valu and sw & set(c.rd): need, why = max(need, 2), "valu sgpr->valu"
                    if c.vmem and sw & set(c.rd): need, why = max(need, 5), "valu sgpr->vmem"
                    if c.op.startswith(("v_readlane", "v_writelane")) and sw & set(c.rd): need, why = max(need, 4), "valu sgpr->lane sel"
            if p.mfma:
                if c.mfma:
                    if vw & (set(c.srcA) | set(c.srcB)): need, why = 8, "mfma->mfma AB"
                    elif vw & set(c.srcC) and set(c.srcC) != vw: need, why = 6, "mfma->mfma C partial"
                elif (c.valu or c.vmem or c.ds) and (vw & set(c.rd) or vw & set(c.wr)): need, why = 8, "mfma D->use"
                if c.valu and set(p.srcC) & set(c.wr) and not (vw & set(c.wr)): need, why = max(need, 3), "mfma C WAR"
            if p.vmem and getattr(p, "store_wide", False):
                if (c.valu or c.mfma) and set(p.data) & set(c.wr): need, why = 2, "store data WAR"
                elif set(p.data) & set(c.wr): need, why = 1, "store data WAR"
            if p.salu and ("s", "m0") in pw and c.vmem and ("s", "m0") in c.rd: need, why = 1, "m0->lds dma"
            if need > dist:
                probs.append(f"{why}: need {need} have {dist}:\n    {p.text}\n    {c.text}")
            dist += c.states
            if dist >= 20: break
            if c.op in ("s_branch", "s_endpgm", "s_setpc_b64"): break
    return probs
```

```python
import sys, argparse
import hazard

KN = "sequential_preLN__sliding_block_cached__glu_gated_swiglu__decode_kernel"

H1, ML, H3, H35, H35S, H4, H2, STAMPS = 0x1000, 0x12000, 0x18000, 0x28000, 0x60000, 0x62000, 0x80000, 0x200000
KT, W13T, W2T, WQT, WOT, PB = 0, 0, 16384, 32768, 49152, 65536
LN, QA, MX, LS, SAME, CW, WP, HB, ONES, HH, LDS_END = 73728, 74752, 76032, 76096, 76160, 76288, 76800, 77824, 77952, 78080, 78208
OOB = 0x80000000
LOG2E = 0x3fb8aa3b
SCALE = 0x3db504f3
EPS = 0x3727c5ac

sWAVE, sG, sJ = 3, 4, 5
sX, sK, sV, sWQ, sWO, sW1, sW3, sW2, sOUT, sWS = 8, 12, 16, 20, 24, 28, 32, 36, 40, 44
sT, sTA, sTB = 48, 49, 50
sTB0 = 52
sSAME, sCBF, sRBF, sFFN = 56, 57, 58, 59
sA, sB, sC, sD, sE, sF = 60, 61, 62, 63, 64, 65
sO1, sO2, sO3 = 66, 67, 68
sRET = 70
sCNT = 72
sMASK = 73
sST0 = 76

def S4(r): return f"s[{r}:{r+3}]"
def V(r, n=1): return f"v{r}" if n == 1 else f"v[{r}:{r+n-1}]"

class G:
    def __init__(self, o):
        self.o = o
        self.L = []
        self.tail = []
        self.npad = 0
        self.uid = 0
    def __call__(self, s):
        for ln in s.strip("\n").split("\n"):
            ln = ln.strip()
            if ln: self.L.append(("" if ln.endswith(":") else "    ") + ln)
    def stamp(self, k):
        if self.o.stamps: self(f"s_memrealtime s[{sST0+2*k}:{sST0+2*k+1}]")
    def nop(self, n):
        if n > 0: self(f"s_nop {n-1}")
    def pad(self):
        if not self.o.pads: return
        k = self.npad; self.npad += 1
        self(f"s_branch L_padskip{k}\nL_pad{k}:\ns_setpc_b64 s[{sRET}:{sRET+1}]\nL_padskip{k}:")
    def srd_consts(self, r, nbytes):
        self(f"s_mov_b32 s{r+2}, {nbytes:#x}\ns_mov_b32 s{r+3}, 0x20000")
    def ldptr(self, r, slot):
        self(f"s_load_dwordx2 s[{r}:{r+1}], s[0:1], {slot*8}")
    def store_sel(self, instr):
        k = self.uid; self.uid += 1
        self(f"s_cbranch_scc1 L_slow{k}\n{instr}\nL_back{k}:")
        self.tail += [f"L_slow{k}:", f"    {instr} sc1", f"    s_branch L_back{k}"]
    def tags(self):
        self(f"""s_andn2_b32 s{sT}, s{sT}, 0xff
s_mul_i32 s{sT}, s{sT}, 0x9e3779b1
s_add_u32 s{sT}, s{sT}, 0x7f4a7d15
s_bfe_u32 s{sA}, s{sT}, 0x80008
s_lshr_b32 s{sB}, s{sT}, 24
s_cmp_eq_u32 s{sA}, s{sB}
s_cselect_b32 s{sA}, 0x200, 0
s_xor_b32 s{sT}, s{sT}, s{sA}
s_and_b32 s{sTA}, s{sT}, 0xffff
s_lshr_b32 s{sTB}, s{sT}, 16
s_and_b32 s{sTB0}, s{sT}, 0xff
s_bfe_u32 s{sTB0+1}, s{sT}, 0x80008
s_bfe_u32 s{sTB0+2}, s{sT}, 0x80010
s_lshr_b32 s{sTB0+3}, s{sT}, 24""")
    def ffn_ids(self):
        self(f"""s_and_b32 s{sRBF}, s{sJ}, 7
s_lshr_b32 s{sA}, s{sJ}, 3
s_lshl_b32 s{sB}, s{sG}, 2
s_mul_i32 s{sC}, s{sG}, 3
s_add_u32 s{sC}, s{sC}, 4
s_cmp_lt_u32 s{sG}, 4
s_cselect_b32 s{sB}, s{sB}, s{sC}
s_cselect_b32 s{sD}, 4, 3
s_add_u32 s{sCBF}, s{sB}, s{sA}
s_cmp_lt_u32 s{sA}, s{sD}
s_cselect_b32 s{sFFN}, 1, 0""")
    def allreduce16(self, op, v):
        for r in (8, 4, 2, 1):
            self(f"{op}_dpp {V(v)}, {V(v)}, {V(v)} row_ror:{r} row_mask:0xf bank_mask:0xf")
            self.nop(2) if r != 1 else None
    def xrow(self, op, v, t, which):
        self(f"v_mov_b32 {V(t)}, {V(v)}\ns_nop 1\nv_permlane{which}_swap_b32 {V(v)}, {V(t)}\n{op} {V(v)}, {V(v)}, {V(t)}")
    def treduce4(self, y, first_nop=2):
        self.nop(first_nop)
        self(f"""v_permlane32_swap_b32 {V(y)}, {V(y+2)}
v_permlane32_swap_b32 {V(y+1)}, {V(y+3)}
v_add_f32 {V(y)}, {V(y)}, {V(y+2)}
v_add_f32 {V(y+1)}, {V(y+1)}, {V(y+3)}
s_nop 1
v_permlane16_swap_b32 {V(y)}, {V(y+1)}
v_add_f32 {V(y)}, {V(y)}, {V(y+1)}""")
    def poll_top(self, name):
        self(f"s_mov_b32 s{sCNT}, {self.o.limit}\nL_{name}:\ns_sub_u32 s{sCNT}, s{sCNT}, 1\ns_cbranch_scc1 L_{name}_done")
    def poll_bot(self, name, cond="vccnz"):
        self(f"s_cbranch_{cond} L_{name}\nL_{name}_done:")
    def dma_tile(self, srd, voff, soff_reg, row_step, lds_base, n, nt):
        for i in range(n):
            self(f"s_mov_b32 m0, {lds_base + i*1024}" if isinstance(lds_base, int) else f"s_add_u32 m0, s{lds_base[0]}, {lds_base[1] + i*1024}")
            if i: self(f"s_add_u32 s{soff_reg}, s{soff_reg}, {row_step}")
            else: self("s_nop 0")
            self(f"buffer_load_dwordx4 {V(voff)}, {S4(srd)}, s{soff_reg} offen {nt} lds")

def gen(o):
    g = G(o)
    nt = "nt" if o.nt else ""
    g.stamp(0)
    g(f"""s_cmp_ge_u32 s2, 256
s_cbranch_scc1 L_end
v_lshrrev_b32 v1, 6, v0
s_and_b32 s{sG}, s2, 7
v_readfirstlane_b32 s{sWAVE}, v1
s_lshr_b32 s{sJ}, s2, 3
v_and_b32 v0, 63, v0""")
    g.ldptr(sWS, 11); g.ldptr(sX, 0)
    if o.stamps:
        for k in range(1, 13): g(f"s_mov_b64 s[{sST0+2*k}:{sST0+2*k+1}], 0")
    g(f"s_cmp_eq_u32 s{sWAVE}, 4\ns_cbranch_scc0 L_A")

    vL, vT0, vT1, vT2, vT3 = 0, 1, 2, 3, 4
    vSW, vDQ, vL16, vN16 = 5, 6, 7, 8
    vTR = 10
    vACT = 14
    vXD = 16
    vXU = 20
    vS, vSQ = 28, 29
    vLNF = 32
    vWB = 48
    vACC = 112
    vP = 48
    g.ldptr(sWQ, 3)
    g.srd_consts(sWS, 0x10000000); g.srd_consts(sX, 1024); g.srd_consts(sWQ, 4194304)
    g(f"""v_lshlrev_b32 {V(vL16)}, 4, v0
v_lshrrev_b32 {V(vT0)}, 4, v0
v_lshlrev_b32 {V(vT0)}, 1, {V(vT0)}
v_and_b32 {V(vT1)}, 7, v0
v_xor_b32 {V(vT0)}, {V(vT0)}, {V(vT1)}
v_lshlrev_b32 {V(vSW)}, 4, {V(vT0)}
v_lshrrev_b32 {V(vT2)}, 3, v0
v_lshl_add_u32 {V(vDQ)}, {V(vT2)}, 13, {V(vSW)}
s_lshr_b32 s{sA}, s{sJ}, 3
s_lshl_b32 s{sO1}, s{sA}, 20
s_lshl_b32 s{sB}, s{sG}, 10
s_add_u32 s{sO1}, s{sO1}, s{sB}
s_and_b32 s{sB}, s{sJ}, 7
s_lshl_b32 s{sB}, s{sB}, 7
s_add_u32 s{sO1}, s{sO1}, s{sB}
s_waitcnt lgkmcnt(0)
buffer_load_dwordx4 {V(vXD,4)}, {V(vL16)}, {S4(sX)}, 0 offen""")
    g.dma_tile(sWQ, vDQ, sO1, 65536, WQT, 16, nt)
    g(f"s_load_dword s{sT}, s[{sWS}:{sWS+1}], 0")
    g.ldptr(sW1, 6); g.ldptr(sW3, 7); g.ldptr(sW2, 8)
    if o.b0: g("s_barrier")
    g.stamp(1)
    g.srd_consts(sW1, 1835008); g.srd_consts(sW3, 1835008); g.srd_consts(sW2, 1835008)
    g.ffn_ids()
    g(f"""v_lshrrev_b32 {V(vT0)}, 2, v0
v_lshlrev_b32 {V(vT0)}, 7, {V(vT0)}
v_bfe_u32 {V(vT1)}, v0, 3, 2
v_lshl_add_u32 {V(vT0)}, {V(vT1)}, 5, {V(vT0)}
v_and_b32 {V(vT1)}, 3, v0
v_lshl_add_u32 {V(vTR)}, {V(vT1)}, 3, {V(vT0)}
v_xor_b32 {V(vTR+1)}, 32, {V(vTR)}
v_xor_b32 {V(vTR+2)}, 64, {V(vTR)}
v_xor_b32 {V(vTR+3)}, 0x60, {V(vTR)}
v_lshrrev_b32 {V(vT0)}, 4, v0
v_lshlrev_b32 {V(vACT)}, 3, {V(vT0)}
v_mov_b32 {V(vT1)}, {OOB:#x}
v_cmp_gt_u32 vcc, 16, v0
s_mov_b32 s{sMASK}, 0xffffff00
v_mov_b32 {V(vT2)}, 0x3f803f80
v_cndmask_b32 {V(vN16)}, {V(vT1)}, {V(vL16)}, vcc
v_and_b32 {V(vT3)}, 31, v0
v_lshlrev_b32 {V(vT3)}, 2, {V(vT3)}
v_add_u32 {V(vT3)}, {ONES}, {V(vT3)}
ds_write_b32 {V(vT3)}, {V(vT2)}""")
    g("s_waitcnt vmcnt(16)")
    for i in range(4):
        g(f"v_lshlrev_b32 {V(vXU+2*i)}, 16, {V(vXD+i)}\nv_and_b32 {V(vXU+2*i+1)}, 0xffff0000, {V(vXD+i)}")
    g(f"v_add_f32 {V(vS)}, {V(vXU)}, {V(vXU+1)}")
    for i in range(2, 8): g(f"v_add_f32 {V(vS)}, {V(vS)}, {V(vXU+i)}")
    g.nop(2); g.allreduce16("v_add_f32", vS); g.xrow("v_add_f32", vS, vT0, 16); g.xrow("v_add_f32", vS, vT0, 32)
    g(f"v_mul_f32 {V(vS)}, 0x3b000000, {V(vS)}")
    g(f"v_sub_f32 {V(vT0)}, {V(vXU)}, {V(vS)}\nv_mul_f32 {V(vSQ)}, {V(vT0)}, {V(vT0)}")
    for i in range(1, 8): g(f"v_sub_f32 {V(vT0)}, {V(vXU+i)}, {V(vS)}\nv_fmac_f32 {V(vSQ)}, {V(vT0)}, {V(vT0)}")
    g.nop(2); g.allreduce16("v_add_f32", vSQ); g.xrow("v_add_f32", vSQ, vT0, 16); g.xrow("v_add_f32", vSQ, vT0, 32)
    g(f"""v_mul_f32 {V(vSQ)}, 0x3b000000, {V(vSQ)}
v_cvt_pk_bf16_f32 {V(vS)}, 0, {V(vS)}
v_cvt_pk_bf16_f32 {V(vSQ)}, 0, {V(vSQ)}
v_add_f32 {V(vSQ)}, {EPS:#x}, {V(vSQ)}
v_cvt_pk_bf16_f32 {V(vSQ)}, 0, {V(vSQ)}
v_sqrt_f32 {V(vSQ)}, {V(vSQ)}
s_nop 0
v_cvt_pk_bf16_f32 {V(vSQ)}, 0, {V(vSQ)}
v_rcp_f32 {V(vSQ)}, {V(vSQ)}""")
    for i in range(8):
        g(f"v_sub_f32 {V(vXU+i)}, {V(vXU+i)}, {V(vS)}\nv_cvt_pk_bf16_f32 {V(vXU+i)}, 0, {V(vXU+i)}\nv_mul_f32 {V(vXU+i)}, {V(vXU+i)}, {V(vSQ)}")
    for i in range(4): g(f"v_cvt_pk_bf16_f32 {V(vXD+i)}, {V(vXU+2*i)}, {V(vXU+2*i+1)}")
    g(f"""v_add_u32 {V(vT0)}, {LN}, {V(vL16)}
s_lshr_b32 s{sA}, s{sJ}, 3
s_lshl_b32 s{sA}, s{sA}, 8
s_add_u32 s{sA}, s{sA}, {LN}
ds_write_b128 {V(vT0)}, {V(vXD,4)}
v_add_u32 {V(vT1)}, s{sA}, {V(vACT)}
s_waitcnt lgkmcnt(0)""")
    for ks in range(4): g(f"ds_read2_b64 {V(vLNF+4*ks,4)}, {V(vT1)} offset0:{8*ks} offset1:{8*ks+4}")
    g.tags()
    g(f"""s_getreg_b32 s{sE}, hwreg(HW_REG_XCC_ID, 0, 4)
s_and_b32 s{sF}, s{sTB0}, 0xf0
s_or_b32 s{sF}, s{sF}, s{sE}
s_lshl_b32 s{sO2}, s{sG}, 13
s_add_u32 s{sO2}, s{sO2}, {H1}
s_lshl_b32 s{sA}, s{sJ}, 8
s_add_u32 s{sO1}, s{sO2}, s{sA}
s_add_u32 s{sO3}, s{sO2}, 4096
v_mov_b32 {V(vT0)}, s{sF}
v_mov_b32 {V(vT1)}, s{sTB0+1}
v_mov_b32 {V(vT2)}, s{sTB0+2}
v_mov_b32 {V(vT3)}, s{sTB0+3}""")
    g.stamp(2)
    for ks in range(4):
        g(f"s_waitcnt vmcnt({12-4*ks})")
        for c in range(4):
            for t in range(2):
                g(f"ds_read_b64_tr_b16 {V(vWB+16*ks+4*c+2*t,2)}, {V(vTR+c)} offset:{WQT+(32*ks+16*t)*128}")
        for c in range(4):
            g(f"s_waitcnt lgkmcnt({6-2*c})")
            g(f"v_mfma_f32_16x16x32_bf16 {V(vACC+4*c,4)}, {V(vLNF+4*ks,4)}, {V(vWB+16*ks+4*c,4)}, {V(vACC+4*c,4) if ks else 0}")
    g.nop(5)
    for c in range(4):
        g(f"v_and_or_b32 {V(vXD+c)}, {V(vACC+4*c)}, s{sMASK}, {V(vT0+c)}")
        if c < 3 and False: g.nop(1)
    g(f"buffer_store_dwordx4 {V(vXD,4)}, {V(vN16)}, {S4(sWS)}, s{sO1} offen sc1")
    g.stamp(3)
    vAA, vAB = 28, 29
    vQW = 9
    g(f"""v_lshrrev_b32 {V(vT0)}, 5, v0
v_mul_u32_u24 {V(vT0)}, 320, {V(vT0)}
v_bfe_u32 {V(vT1)}, v0, 4, 1
v_lshl_add_u32 {V(vT0)}, {V(vT1)}, 7, {V(vT0)}
v_and_b32 {V(vT1)}, 15, v0
v_lshl_add_u32 {V(vT0)}, {V(vT1)}, 1, {V(vT0)}
v_add_u32 {V(vQW)}, {QA}, {V(vT0)}""")
    g.poll_top("h1")
    for rb in range(4):
        for hf in range(2):
            g(f"buffer_load_dwordx4 {V(vP+8*rb+4*hf,4)}, {V(vL16)}, {S4(sWS)}, s{sO2 if rb < 2 else sO3} offen offset:{(rb&1)*2048+hf*1024} sc1")
    g.pad()
    for k in range(8):
        g(f"s_waitcnt vmcnt({7-k})")
        b = vP + 4*k
        g(f"v_xor_b32 {V(b)}, s{sF}, {V(b)}")
        for e in range(1, 4): g(f"v_xor_b32 {V(b+e)}, s{sTB0+e}, {V(b+e)}")
        if k == 0:
            g(f"v_mov_b32 {V(vAA)}, {V(b)}\nv_or3_b32 {V(vAB)}, {V(b+1)}, {V(b+2)}, {V(b+3)}")
        else:
            g(f"v_or_b32 {V(vAA)}, {V(vAA)}, {V(b)}\nv_or3_b32 {V(vAB)}, {V(vAB)}, {V(b+1)}, {V(b+2)}\nv_or_b32 {V(vAB)}, {V(vAB)}, {V(b+3)}")
        g(f"v_and_b32 {V(b)}, s{sMASK}, {V(b)}")
    g(f"""v_and_b32 {V(vT0)}, 0xf0, {V(vAA)}
v_and_b32 {V(vAB)}, 0xff, {V(vAB)}
v_or_b32 {V(vT0)}, {V(vT0)}, {V(vAB)}
v_cmp_ne_u32 vcc, 0, {V(vT0)}""")
    g.poll_bot("h1")
    g.stamp(4)
    for hf in range(2):
        for e in (0, 2):
            a = vP + 4*hf + e
            g(f"v_pk_add_f32 {V(a,2)}, {V(a,2)}, {V(a+8,2)}\nv_pk_add_f32 {V(a+16,2)}, {V(a+16,2)}, {V(a+24,2)}\nv_pk_add_f32 {V(a,2)}, {V(a,2)}, {V(a+16,2)}")
            g(f"v_cvt_pk_bf16_f32 {V(a)}, {V(a)}, {V(a+1)}")
            g(f"ds_write_b16 {V(vQW)}, {V(a)} offset:{hf*640+e*32}\nds_write_b16_d16_hi {V(vQW)}, {V(a)} offset:{hf*640+(e+1)*32}")
    g(f"""v_and_b32 {V(vAA)}, 15, {V(vAA)}
v_cmp_ne_u32 vcc, 0, {V(vAA)}
v_mov_b32 {V(vT1)}, {SAME}
s_cmp_eq_u64 vcc, 0
s_cselect_b32 s{sSAME}, {0 if o.force_slow else 1}, 0
v_mov_b32 {V(vT0)}, s{sSAME}
ds_write_b32 {V(vT1)}, {V(vT0)}
s_waitcnt lgkmcnt(0)
s_barrier""")
    g.stamp(5)
    vML, vD13, vD2 = 9, 6, 15
    g(f"""v_lshrrev_b32 {V(vT2)}, 3, v0
v_mul_u32_u24 {V(vD13)}, 3584, {V(vT2)}
v_add_u32 {V(vD13)}, {V(vD13)}, {V(vSW)}
v_lshl_add_u32 {V(vD2)}, {V(vT2)}, 10, {V(vSW)}
v_lshlrev_b32 {V(vT0)}, 9, v0
v_mov_b32 {V(vT1)}, {OOB:#x}
v_cmp_gt_u32 vcc, 4, v0
v_and_b32 {V(vT2)}, 3, v0
v_lshlrev_b32 {V(vT2)}, 4, {V(vT2)}
v_cndmask_b32 {V(vML)}, {V(vT1)}, {V(vT0)}, vcc
v_add_u32 {V(vT2)}, {MX}, {V(vT2)}
s_lshl_b32 s{sO1}, s{sG}, 11
s_lshl_b32 s{sA}, s{sJ}, 4
s_add_u32 s{sO1}, s{sO1}, s{sA}
s_add_u32 s{sO1}, s{sO1}, {ML}""")
    g(f"""s_lshl_b32 s{sO3}, s{sCBF}, 16
s_lshl_b32 s{sA}, s{sRBF}, 7
s_add_u32 s{sO3}, s{sO3}, s{sA}""")
    g("s_barrier")
    if o.w2when == "early":
        g(f"s_cmp_eq_u32 s{sFFN}, 0\ns_cbranch_scc1 L_Z_now2")
        g.dma_tile(sW2, vD2, sO3, 8192, W2T, 8, nt)
        g("L_Z_now2:")
    g(f"""v_mov_b32 {V(vXD+2)}, s{sT}
v_mov_b32 {V(vXD+3)}, s{sT}
s_barrier""")
    g(f"""ds_read_b128 {V(20,4)}, {V(vT2)}
ds_read_b128 {V(24,4)}, {V(vT2)} offset:{LS-MX}
s_cmp_eq_u32 s{sSAME}, 0
s_waitcnt lgkmcnt(1)
v_max3_f32 {V(vXD)}, v20, v21, v22
v_max_f32 {V(vXD)}, {V(vXD)}, v23
s_waitcnt lgkmcnt(0)
v_add_f32 v24, v24, v25
v_add_f32 v26, v26, v27
v_add_f32 {V(vXD+1)}, v24, v26""")
    g.store_sel(f"buffer_store_dwordx4 {V(vXD,4)}, {V(vML)}, {S4(sWS)}, s{sO1} offen")
    g(f"""s_and_b32 s{sA}, s{sJ}, 7
s_lshl_b32 s{sO1}, s{sA}, 13
s_lshl_b32 s{sA}, s{sG}, 10
s_add_u32 s{sO1}, s{sO1}, s{sA}
s_lshr_b32 s{sA}, s{sJ}, 3
s_lshl_b32 s{sA}, s{sA}, 8
s_add_u32 s{sO1}, s{sO1}, s{sA}
s_add_u32 s{sO1}, s{sO1}, {H3}
s_mul_i32 s{sO2}, s{sRBF}, {64*3584}
s_lshl_b32 s{sA}, s{sCBF}, 7
s_add_u32 s{sO2}, s{sO2}, s{sA}
s_mov_b32 s{sB}, s{sO2}
v_and_b32 {V(vT0)}, 15, v0
v_lshlrev_b32 {V(vT0)}, 4, {V(vT0)}
v_add_u32 {V(9)}, {WP}, {V(vT0)}
v_mov_b32 {V(vT0)}, s{sTB0}
v_mov_b32 {V(vT1)}, s{sTB0+1}
v_mov_b32 {V(vT2)}, s{sTB0+2}
v_mov_b32 {V(vT3)}, s{sTB0+3}""")
    g.pad()
    g("s_barrier")
    g("s_barrier")
    g.stamp(6)
    for pw in range(4): g(f"ds_read_b128 {V(32+4*pw,4)}, v9 offset:{pw*256}")
    g(f"""s_waitcnt lgkmcnt(2)
v_pk_add_f32 v[32:33], v[32:33], v[36:37]
v_pk_add_f32 v[34:35], v[34:35], v[38:39]
s_waitcnt lgkmcnt(0)
v_pk_add_f32 v[40:41], v[40:41], v[44:45]
v_pk_add_f32 v[42:43], v[42:43], v[46:47]
v_pk_add_f32 v[32:33], v[32:33], v[40:41]
v_pk_add_f32 v[34:35], v[34:35], v[42:43]""")
    for c in range(4): g(f"v_and_or_b32 {V(32+c)}, {V(32+c)}, s{sMASK}, {V(vT0+c)}")
    g(f"buffer_store_dwordx4 v[32:35], {V(vN16)}, {S4(sWS)}, s{sO1} offen sc1")
    g.stamp(7)
    g(f"s_cmp_eq_u32 s{sFFN}, 0\ns_cbranch_scc1 L_exit")
    g.dma_tile(sW1, vD13, sO2, 8*3584, W13T, 8, nt)
    g.dma_tile(sW3, vD13, sB, 8*3584, W13T + 8192, 8, nt)
    if o.w2when == "w13": g.dma_tile(sW2, vD2, sO3, 8192, W2T, 8, nt)
    g(f"""v_and_b32 {V(vT0)}, 15, v0
v_cmp_eq_u32 vcc, 1, {V(vT0)}
v_mov_b32 {V(vT1)}, {HB}
v_mov_b32 {V(vT2)}, {ONES}
v_add_u32 v21, {HB}, {V(vACT)}
v_cndmask_b32 {V(vT1)}, {V(vT1)}, {V(vT2)}, vcc
v_add_u32 v20, {V(vT1)}, {V(vACT)}
v_cmp_eq_u32 vcc, 0, v0
v_mov_b32 {V(vT1)}, {OOB:#x}
s_lshl_b32 s{sO1}, s{sCBF}, 7
s_lshl_b32 s{sA}, s{sRBF}, 4
v_cndmask_b32 v22, {V(vT1)}, 0, vcc
s_add_u32 s{sO1}, s{sO1}, s{sA}
s_add_u32 s{sO1}, s{sO1}, {H35S}
v_mov_b32 v50, s{sT}
v_mov_b32 v51, s{sT}
s_waitcnt vmcnt({8 if o.w2when == "w13" else 0})""")
    g.stamp(8)
    g("s_barrier")
    g(f"""ds_read2_b64 v[32:35], v20 offset0:0 offset1:4
ds_read2_b64 v[36:39], v21 offset0:0 offset1:4
ds_read2_b64 v[40:43], v20 offset0:8 offset1:12
ds_read2_b64 v[44:47], v21 offset0:8 offset1:12
s_cmp_eq_u32 s{sSAME}, 0
s_waitcnt lgkmcnt(2)
v_mfma_f32_16x16x32_bf16 v[52:55], v[32:35], v[36:39], 0
s_waitcnt lgkmcnt(0)
v_mfma_f32_16x16x32_bf16 v[52:55], v[40:43], v[44:47], v[52:55]
s_nop 7
v_mov_b32 v48, v52
v_mov_b32 v49, v53""")
    g.store_sel(f"buffer_store_dwordx4 v[48:51], v22, {S4(sWS)}, s{sO1} offen")
    if o.w2when == "late": g.dma_tile(sW2, vD2, sO3, 8192, W2T, 8, nt)
    g("s_waitcnt vmcnt(0)")
    g.stamp(9)
    g("s_barrier")
    g("s_branch L_exit")

    g("L_A:")
    vKD = 2
    vVD = 6
    vKR = 8
    vQR, vMXA, vPBW, vPBR, vL8 = 12, 13, 14, 15, 16
    vH2, vMLA, vCWW, vCWR, vWPW = 17, 18, 19, 20, 21
    vTRO = 22
    vTRW, vH3, vXO, vXV, vHBW, vACTH, vN16a, vM0, vM1, vDO, vT = 26, 27, 28, 29, 30, 31, 32, 33, 34, 35, 36
    vVV = 40
    vKF = 72
    vQF = 104
    vSS = 120
    vPF = 72
    vOA = 88
    vH = 7
    g.ldptr(sK, 1); g.ldptr(sV, 2); g.ldptr(sWO, 4)
    g.srd_consts(sWS, 0x10000000); g.srd_consts(sX, 1024); g.srd_consts(sK, 0x4000000); g.srd_consts(sV, 0x4000000); g.srd_consts(sWO, 4194304)
    g.ffn_ids()
    T0, T1, T2, T3 = vT, vT+1, vT+2, vT+3
    g(f"""v_lshrrev_b32 {V(T0)}, 4, v0
v_and_b32 {V(T1)}, 15, v0
v_xor_b32 {V(T2)}, {V(T0)}, {V(T1)}
v_lshlrev_b32 {V(T2)}, 4, {V(T2)}
v_lshl_add_u32 {V(vKD)}, {V(T0)}, 8, {V(T2)}
v_xor_b32 {V(vKD+1)}, 64, {V(vKD)}
v_xor_b32 {V(vKD+2)}, 0x80, {V(vKD)}
v_xor_b32 {V(vKD+3)}, 0xc0, {V(vKD)}
v_lshlrev_b32 {V(T3)}, 4, {V(T1)}
v_lshl_add_u32 {V(vVD)}, {V(T0)}, 10, {V(T3)}
s_lshl_b32 s{sA}, s{sG}, 23
s_lshl_b32 s{sB}, s{sJ}, 15
s_add_u32 s{sO1}, s{sA}, s{sB}
s_lshl_b32 s{sB}, s{sWAVE}, 13
s_add_u32 s{sO1}, s{sO1}, s{sB}
s_add_u32 s{sO1}, s{sO1}, {28672*256}
s_add_u32 s{sO2}, s{sO1}, 4096
s_mov_b32 m0, s{sB}
s_add_u32 s69, s{sB}, 4096
v_lshl_add_u32 {V(vKR)}, {V(T1)}, 8, {V(T2)}
v_add_u32 {V(vKR)}, s{sB}, {V(vKR)}
v_xor_b32 {V(vKR+1)}, 64, {V(vKR)}
v_xor_b32 {V(vKR+2)}, 0x80, {V(vKR)}
v_xor_b32 {V(vKR+3)}, 0xc0, {V(vKR)}
s_lshl_b32 s{sC}, s{sRBF}, 6
s_lshl_b32 s{sD}, s{sWAVE}, 4
s_add_u32 s{sC}, s{sC}, s{sD}
v_and_b32 {V(T2)}, 3, v0
v_lshl_add_u32 {V(T2)}, {V(T2)}, 2, {V(T0)}
v_add_u32 {V(vXO)}, s{sC}, {V(T2)}
v_lshlrev_b32 {V(vXO)}, 1, {V(vXO)}
v_add_u32 {V(vHBW)}, s{sD}, {V(T2)}
v_lshlrev_b32 {V(vHBW)}, 1, {V(vHBW)}
v_add_u32 {V(vHBW)}, {HB}, {V(vHBW)}
s_waitcnt lgkmcnt(0)
s_load_dword s{sT}, s[{sWS}:{sWS+1}], 0""")
    g.ldptr(sOUT, 9)
    if o.b0: g("s_barrier")
    g(f"buffer_load_ushort {V(vXV)}, {V(vXO)}, {S4(sX)}, 0 offen")
    W = o.window
    def issue(i):
        if i < 8:
            if i == 4: g(f"s_mov_b32 m0, s69\ns_nop 0")
            g(f"buffer_load_dwordx4 {V(vKD+(i&3))}, {S4(sK)}, s{sO1 if i < 4 else sO2} offen offset:{(i&3)*1024} {nt} lds")
        else:
            k = i - 8
            g(f"buffer_load_dwordx4 {V(vVV+4*k,4)}, {V(vVD)}, {S4(sV)}, s{sO1 if k < 4 else sO2} offen offset:{(k&3)*256} {nt}")
    for i in range(min(W, 16)): issue(i)
    g.stamp(1)
    g.srd_consts(sOUT, 1024)
    g(f"""v_lshrrev_b32 {V(T2)}, 2, {V(T1)}
v_mul_u32_u24 {V(vQR)}, 320, {V(T2)}
v_lshl_add_u32 {V(vQR)}, {V(T0)}, 4, {V(vQR)}
v_add_u32 {V(vQR)}, {QA}, {V(vQR)}
s_lshl_b32 s{sA}, s{sWAVE}, 2
s_add_u32 s{sA}, s{sA}, {MX}
v_lshlrev_b32 {V(vMXA)}, 4, {V(T2)}
v_add_u32 {V(vMXA)}, s{sA}, {V(vMXA)}
s_lshl_b32 s{sA}, s{sWAVE}, 11
s_add_u32 s{sA}, s{sA}, {PB}
v_lshlrev_b32 {V(vPBW)}, 4, v0
v_add_u32 {V(vPBW)}, s{sA}, {V(vPBW)}
s_lshl_b32 s{sA}, s{sWAVE}, 8
s_add_u32 s{sA}, s{sA}, {PB}
v_bfe_u32 {V(T2)}, v0, 1, 1
v_lshlrev_b32 {V(vPBR)}, 10, {V(T2)}
v_lshrrev_b32 {V(T2)}, 2, v0
v_lshl_add_u32 {V(vPBR)}, {V(T2)}, 4, {V(vPBR)}
v_and_b32 {V(T3)}, 1, v0
v_lshl_add_u32 {V(vPBR)}, {V(T3)}, 3, {V(vPBR)}
v_add_u32 {V(vPBR)}, s{sA}, {V(vPBR)}
v_lshlrev_b32 {V(vL8)}, 3, v0
v_lshlrev_b32 {V(vH2)}, 9, {V(T1)}
v_lshl_add_u32 {V(vH2)}, {V(T0)}, 4, {V(vH2)}
v_and_b32 {V(T3)}, 31, v0
v_lshlrev_b32 {V(vMLA)}, 4, {V(T3)}
s_lshl_b32 s{sA}, s{sWAVE}, 7
s_add_u32 s{sA}, s{sA}, {CW}
v_lshlrev_b32 {V(vCWW)}, 2, {V(T3)}
v_add_u32 {V(vCWW)}, s{sA}, {V(vCWW)}
v_lshlrev_b32 {V(vCWR)}, 4, {V(T0)}
v_add_u32 {V(vCWR)}, s{sA}, {V(vCWR)}
s_lshl_b32 s{sA}, s{sWAVE}, 8
s_add_u32 s{sA}, s{sA}, {WP}
v_lshlrev_b32 {V(vWPW)}, 2, v0
v_add_u32 {V(vWPW)}, s{sA}, {V(vWPW)}
v_lshlrev_b32 {V(vH3)}, 8, {V(T2)}
v_and_b32 {V(T3)}, 3, v0
v_lshl_add_u32 {V(vH3)}, {V(T3)}, 4, {V(vH3)}
v_lshlrev_b32 {V(T2)}, 7, {V(T2)}
v_lshl_add_u32 {V(T2)}, {V(T3)}, 3, {V(T2)}
v_bfe_u32 {V(T3)}, v0, 3, 2
v_lshl_add_u32 {V(T2)}, {V(T3)}, 5, {V(T2)}
s_lshl_b32 s{sA}, s{sWAVE}, 5
v_xor_b32 {V(vTRW)}, s{sA}, {V(T2)}
s_lshl_b32 s{sA}, s{sWAVE}, 12
v_add_u32 {V(vTRO)}, s{sA}, {V(T2)}
v_xor_b32 {V(vTRO+1)}, 32, {V(vTRO)}
v_xor_b32 {V(vTRO+2)}, 64, {V(vTRO)}
v_xor_b32 {V(vTRO+3)}, 0x60, {V(vTRO)}
v_cmp_eq_u32 vcc, 1, {V(T1)}
v_mov_b32 {V(T2)}, {HB}
v_mov_b32 {V(T3)}, {ONES}
v_cndmask_b32 {V(vACTH)}, {V(T2)}, {V(T3)}, vcc
v_lshl_add_u32 {V(vACTH)}, {V(T0)}, 3, {V(vACTH)}
v_cmp_gt_u32 vcc, 16, v0
v_mov_b32 {V(T2)}, {OOB:#x}
v_lshlrev_b32 {V(T3)}, 4, v0
v_cndmask_b32 {V(vN16a)}, {V(T2)}, {V(T3)}, vcc
v_and_b32 {V(T2)}, 1, v0
v_cmp_eq_u32 vcc, 1, {V(T2)}
v_mov_b32 {V(T2)}, 0xffff
v_mov_b32 {V(T3)}, 0xffff0000
v_cndmask_b32 {V(T2)}, {V(T2)}, {V(T3)}, vcc
v_and_b32 {V(T3)}, 2, v0
v_cmp_eq_u32 vcc, 0, {V(T3)}
v_lshlrev_b32 {V(T0)}, 1, {V(T0)}
v_and_b32 {V(T3)}, 7, v0
v_cndmask_b32 {V(vM0)}, 0, {V(T2)}, vcc
v_cndmask_b32 {V(vM1)}, {V(T2)}, 0, vcc
v_xor_b32 {V(T0)}, {V(T0)}, {V(T3)}
v_lshlrev_b32 {V(T0)}, 4, {V(T0)}
v_lshrrev_b32 {V(T2)}, 3, v0
v_lshl_add_u32 {V(vDO)}, {V(T2)}, 10, {V(T0)}
s_mov_b32 s{sMASK}, 0xffffff00
s_waitcnt lgkmcnt(0)""")
    g.tags()
    if o.pads: g("; PADCALLS")
    for i in range(W, 16):
        g(f"s_waitcnt vmcnt({W-1})")
        issue(i)
    g.stamp(2)
    g(f"""s_lshl_b32 s{sA}, s{sG}, 2
s_lshr_b32 s{sB}, s{sJ}, 3
s_add_u32 s{sE}, s{sA}, s{sB}
s_lshl_b32 s{sO3}, s{sE}, 17
s_lshl_b32 s{sB}, s{sWAVE}, 15
s_add_u32 s{sO3}, s{sO3}, s{sB}
s_and_b32 s{sB}, s{sJ}, 7
s_lshl_b32 s{sB}, s{sB}, 7
s_add_u32 s{sO3}, s{sO3}, s{sB}
s_lshl_b32 s{sF}, s{sWAVE}, 12
v_mov_b32 {V(T0)}, {SAME}
s_waitcnt vmcnt(8)""")
    for blk in range(2):
        for ks in range(4):
            g(f"ds_read_b128 {V(vKF+16*blk+4*ks,4)}, {V(vKR+ks)} offset:{KT+blk*4096}")
    g("s_waitcnt lgkmcnt(0)")
    g.stamp(3)
    g("s_barrier")
    g.stamp(4)
    for ks in range(4): g(f"ds_read_b128 {V(vQF+4*ks,4)}, {V(vQR)} offset:{ks*64}")
    g(f"ds_read_b32 {V(T1)}, {V(T0)}")
    g.dma_tile(sWO, vDO, sO3, 8192, (sF, WOT), 4, nt)
    for ks in range(4):
        g(f"s_waitcnt lgkmcnt({4-ks})")
        for blk in range(2):
            g(f"v_mfma_f32_16x16x32_bf16 {V(vSS+4*blk,4)}, {V(vKF+16*blk+4*ks,4)}, {V(vQF+4*ks,4)}, {V(vSS+4*blk,4) if ks else 0}")
    g(f"""s_waitcnt lgkmcnt(0)
v_readfirstlane_b32 s{sSAME}, {V(T1)}
s_mov_b32 s{sA}, {SCALE:#x}
s_mov_b32 s{sB}, {LOG2E:#x}
s_nop 3""")
    for i in range(8):
        g(f"v_cvt_pk_bf16_f32 {V(vSS+i)}, 0, {V(vSS+i)}\nv_mul_f32 {V(vSS+i)}, s{sA}, {V(vSS+i)}\nv_cvt_pk_bf16_f32 {V(vSS+i)}, 0, {V(vSS+i)}")
    g(f"""v_max3_f32 {V(T0)}, {V(vSS)}, {V(vSS+1)}, {V(vSS+2)}
v_max3_f32 {V(T1)}, {V(vSS+3)}, {V(vSS+4)}, {V(vSS+5)}
v_max3_f32 {V(T0)}, {V(T0)}, {V(vSS+6)}, {V(vSS+7)}
v_max_f32 {V(T0)}, {V(T0)}, {V(T1)}""")
    g.xrow("v_max_f32", T0, T1, 16); g.xrow("v_max_f32", T0, T1, 32)
    g(f"""ds_write_b32 {V(vMXA)}, {V(T0)}
v_and_b32 {V(T2)}, -16, {V(vMXA)}
s_waitcnt lgkmcnt(0)
s_barrier""")
    g(f"""ds_read_b128 {V(vQF,4)}, {V(T2)}
s_waitcnt lgkmcnt(0)
v_max3_f32 {V(T0)}, {V(vQF)}, {V(vQF+1)}, {V(vQF+2)}
v_max_f32 {V(T0)}, {V(T0)}, {V(vQF+3)}
v_mul_f32 {V(T0)}, s{sB}, {V(T0)}""")
    for i in range(8):
        g(f"v_fma_f32 {V(vSS+i)}, {V(vSS+i)}, s{sB}, -{V(T0)}\nv_exp_f32 {V(vSS+i)}, {V(vSS+i)}")
    g(f"""s_nop 0
v_add_f32 {V(T0)}, {V(vSS)}, {V(vSS+1)}
v_add_f32 {V(T1)}, {V(vSS+2)}, {V(vSS+3)}
v_add_f32 {V(T2)}, {V(vSS+4)}, {V(vSS+5)}
v_add_f32 {V(T3)}, {V(vSS+6)}, {V(vSS+7)}
v_add_f32 {V(T0)}, {V(T0)}, {V(T1)}
v_add_f32 {V(T2)}, {V(T2)}, {V(T3)}
v_add_f32 {V(T0)}, {V(T0)}, {V(T2)}""")
    g.xrow("v_add_f32", T0, T1, 16); g.xrow("v_add_f32", T0, T1, 32)
    g(f"ds_write_b32 {V(vMXA)}, {V(T0)} offset:{LS-MX}")
    for i in range(8):
        g(f"v_cvt_pk_bf16_f32 {V(vSS+i)}, {V(vSS+i)}, {V(vSS+i)}\nv_and_b32 {V(vPF+2*i)}, {V(vSS+i)}, {V(vM0)}\nv_and_b32 {V(vPF+2*i+1)}, {V(vSS+i)}, {V(vM1)}")
    g(f"""s_lshl_b32 s{sA}, s{sG}, 2
s_add_u32 s{sA}, s{sA}, s{sWAVE}
s_lshl_b32 s{sA}, s{sA}, 5
s_add_u32 s{sA}, s{sA}, s{sJ}
s_lshl_b32 s{sO1}, s{sA}, 9
s_add_u32 s{sO1}, s{sO1}, {H2}
s_lshl_b32 s{sO2}, s{sE}, 14
s_lshl_b32 s{sA}, s{sWAVE}, 7
s_add_u32 s{sO2}, s{sO2}, s{sA}
s_add_u32 s{sO2}, s{sO2}, {H2}
s_add_u32 s{sO3}, s{sO2}, 8192
s_lshl_b32 s{sF}, s{sE}, 9
s_add_u32 s{sF}, s{sF}, {ML}
s_mov_b32 s{sC}, 0xffff0000
v_mov_b32 {V(T3)}, s{sTB}
s_waitcnt lgkmcnt(0)
s_barrier""")
    g.stamp(5)
    g.pad()
    for k in range(8):
        g(f"s_waitcnt vmcnt({4+7-k})")
        for hf in range(2):
            g(f"v_mfma_f32_16x16x16_bf16 {V(vOA+4*hf,4)}, {V(vPF+2*k,2)}, {V(vVV+4*k+2*hf,2)}, {V(vOA+4*hf,4) if k else 0}")
    g.stamp(6)
    g(f"""s_nop 6
ds_write_b128 {V(vPBW)}, {V(vOA,4)}
ds_write_b128 {V(vPBW)}, {V(vOA+4,4)} offset:1024
s_cmp_eq_u32 s{sSAME}, 0
s_waitcnt lgkmcnt(0)
s_barrier""")
    for w in range(4): g(f"ds_read_b64 {V(vQF+2*w,2)}, {V(vPBR)} offset:{w*2048}")
    g(f"""s_waitcnt lgkmcnt(2)
v_pk_add_f32 {V(vQF,2)}, {V(vQF,2)}, {V(vQF+2,2)}
s_waitcnt lgkmcnt(0)
v_pk_add_f32 {V(vQF+4,2)}, {V(vQF+4,2)}, {V(vQF+6,2)}
v_pk_add_f32 {V(vQF,2)}, {V(vQF,2)}, {V(vQF+4,2)}
v_cvt_pk_bf16_f32 {V(vQF+2)}, {V(vQF)}, {V(vQF+1)}
v_lshl_or_b32 {V(vQF)}, {V(vQF+2)}, 16, s{sTA}
v_and_or_b32 {V(vQF+1)}, {V(vQF+2)}, s{sC}, {V(T3)}""")
    g.store_sel(f"buffer_store_dwordx2 {V(vQF,2)}, {V(vL8)}, {S4(sWS)}, s{sO1} offen")
    g.stamp(7)
    vO = 40
    vMLd = 56
    vAF = 60
    vWB2 = 72
    vD = 88
    vCf = 120
    vIL = 68
    vAcc = 69
    g(f"s_mov_b32 s{sA}, 0x07060302\ns_mov_b32 s{sB}, {LOG2E:#x}")
    g.poll_top("h2")
    g(f"buffer_load_dwordx4 {V(vMLd,4)}, {V(vMLA)}, {S4(sWS)}, s{sF} offen sc1")
    for rbk in range(2):
        for a in range(2):
            g(f"buffer_load_dwordx4 {V(vO+8*rbk+4*a,4)}, {V(vH2)}, {S4(sWS)}, s{sO2 if rbk == 0 else sO3} offen offset:{a*64} sc1")
    g.pad()
    g("s_waitcnt vmcnt(5)")
    for c in range(4):
        for t in range(2):
            g(f"ds_read_b64_tr_b16 {V(vWB2+4*c+2*t,2)}, {V(vTRO+c)} offset:{WOT+16*t*128}")
    g(f"""s_waitcnt vmcnt(4)
v_mov_b32 {V(T0)}, {V(vMLd)}
v_xor_b32 {V(vAcc)}, s{sT}, {V(vMLd+2)}
s_nop 0""")
    g.allreduce16("v_max_f32", T0); g.xrow("v_max_f32", T0, T1, 16)
    g(f"""v_sub_f32 {V(T0)}, {V(vMLd)}, {V(T0)}
v_mul_f32 {V(T0)}, s{sB}, {V(T0)}
v_exp_f32 {V(T0)}, {V(T0)}
v_bitop3_b32 {V(vAcc)}, {V(vMLd+3)}, s{sT}, {V(vAcc)} bitop3:0xbe
ds_write_b32 {V(vCWW)}, {V(T0)}
v_mul_f32 {V(vIL)}, {V(T0)}, {V(vMLd+1)}
v_cmp_ne_u32 s[{sC}:{sC+1}], 0, {V(vAcc)}
ds_read_b128 {V(vCf,4)}, {V(vCWR)}
ds_read_b128 {V(vCf+4,4)}, {V(vCWR)} offset:64""")
    g.allreduce16("v_add_f32", vIL); g.xrow("v_add_f32", vIL, T1, 16)
    g(f"v_rcp_f32 {V(vIL)}, {V(vIL)}")
    for rbk in range(2):
        g(f"s_waitcnt vmcnt({2-2*rbk})")
        for i in range(8):
            r = vO + 8*rbk + i
            tg = sTA if i % 2 == 0 else sTB
            if rbk == 0 and i == 0: g(f"v_xor_b32 {V(vAcc)}, s{tg}, {V(r)}")
            else: g(f"v_bitop3_b32 {V(vAcc)}, {V(r)}, s{tg}, {V(vAcc)} bitop3:0xbe")
        for i in range(4):
            g(f"v_perm_b32 {V(vAF+4*rbk+i)}, {V(vO+8*rbk+2*i+1)}, {V(vO+8*rbk+2*i)}, s{sA}")
        if rbk == 0: g("s_waitcnt lgkmcnt(3)")
        else: g(f"v_and_b32 {V(vAcc)}, 0xffff, {V(vAcc)}")
        g.nop(1)
        for c in range(4):
            g(f"v_mfma_f32_16x16x32_bf16 {V(vD+16*rbk+4*c,4)}, {V(vAF+4*rbk,4)}, {V(vWB2+4*c,4)}, 0")
    g(f"""v_cmp_ne_u32 vcc, 0, {V(vAcc)}
s_or_b64 vcc, vcc, s[{sC}:{sC+1}]""")
    g.poll_bot("h2", "scc1")
    g.stamp(8)
    g("s_waitcnt lgkmcnt(0)")
    vY = 60
    for c in range(4):
        g(f"v_mul_f32 {V(vY+c)}, {V(vCf)}, {V(vD+4*c)}")
        for r in range(1, 4): g(f"v_fmac_f32 {V(vY+c)}, {V(vCf+r)}, {V(vD+4*c+r)}")
    for c in range(4):
        for r in range(4): g(f"v_fmac_f32 {V(vY+c)}, {V(vCf+4+r)}, {V(vD+16+4*c+r)}")
    g.treduce4(vY)
    g(f"""v_mul_f32 {V(vY)}, {V(vY)}, {V(vIL)}
ds_write_b32 {V(vWPW)}, {V(vY)}
s_lshl_b32 s{sO1}, s{sRBF}, 13
s_lshl_b32 s{sA}, s{sWAVE}, 6
s_add_u32 s{sO1}, s{sO1}, s{sA}
s_add_u32 s{sE}, s{sO1}, {H4}
s_add_u32 s{sO1}, s{sO1}, {H3}
s_add_u32 s{sO2}, s{sO1}, 4096
s_cmp_eq_u32 s{sFFN}, 0
s_waitcnt lgkmcnt(0)
s_barrier""")
    g("s_cbranch_scc1 L_exit")
    g.stamp(9)
    vY2 = 44
    def gather2(name, so_a, so_b, va_b, tb_regs):
        g.poll_top(name)
        g(f"buffer_load_dwordx4 {V(40,4)}, {V(vH3)}, {S4(sWS)}, s{so_a} offen sc1")
        g(f"buffer_load_dwordx4 {V(44,4)}, {V(va_b)}, {S4(sWS)}, s{so_b} offen sc1")
        g.pad()
        g("s_waitcnt vmcnt(1)")
        for e in range(4): g(f"v_xor_b32 {V(40+e)}, s{sTB0+e}, {V(40+e)}")
        g(f"v_or3_b32 {V(vAcc)}, v40, v41, v42\ns_waitcnt vmcnt(0)")
        for e in range(4): g(f"v_xor_b32 {V(44+e)}, {tb_regs[e]}, {V(44+e)}")
        g(f"""v_or3_b32 {V(vAcc)}, {V(vAcc)}, v43, v44
v_or3_b32 {V(vAcc)}, {V(vAcc)}, v45, v46
v_or_b32 {V(vAcc)}, {V(vAcc)}, v47
v_and_b32 {V(vAcc)}, 0xff, {V(vAcc)}
v_pk_add_f32 v[40:41], v[40:41], v[44:45]
v_pk_add_f32 v[42:43], v[42:43], v[46:47]
v_cmp_ne_u32 vcc, 0, {V(vAcc)}""")
        g.poll_bot(name)
        g.treduce4(40, 1)
        g(f"""s_nop 1
v_add_f32_dpp v40, v40, v40 row_ror:8 row_mask:0xf bank_mask:0xf
s_nop 1
v_add_f32_dpp v40, v40, v40 row_ror:4 row_mask:0xf bank_mask:0xf""")
    g(f"v_lshlrev_b32 {V(vXV)}, 16, {V(vXV)}")
    gather2("h3", sO1, sO2, vH3, [f"s{sTB0+e}" for e in range(4)])
    g.stamp(10)
    g(f"""v_cvt_pk_bf16_f32 v40, 0, v40
v_add_f32 v40, v40, {V(vXV)}
v_cvt_pk_bf16_f32 {V(vH)}, 0, v40
ds_write_b16_d16_hi {V(vHBW)}, {V(vH)}
s_lshl_b32 s{sO2}, s{sCBF}, 13
s_lshl_b32 s{sA}, s{sWAVE}, 8
s_add_u32 s{sO2}, s{sO2}, s{sA}
s_add_u32 s{sO2}, s{sO2}, {H35}
s_lshl_b32 s{sA}, s{sRBF}, 10
s_add_u32 s{sO1}, s{sO2}, s{sA}
s_add_u32 s{sO3}, s{sO2}, 4096
s_lshl_b32 s{sF}, s{sCBF}, 7
s_add_u32 s{sF}, s{sF}, {H35S}
v_mov_b32 {V(T0)}, s{sTB0}
v_mov_b32 {V(T1)}, s{sTB0+1}
v_mov_b32 {V(T2)}, s{sTB0+2}
v_mov_b32 {V(T3)}, s{sTB0+3}
s_cmp_eq_u32 s{sSAME}, 0
s_waitcnt lgkmcnt(0)
s_barrier""")
    for ks in range(2):
        g(f"ds_read2_b64 {V(40+4*ks,4)}, {V(vACTH)} offset0:{8*ks} offset1:{8*ks+4}")
        for mat in range(2):
            for t in range(2):
                g(f"ds_read_b64_tr_b16 {V(48+8*mat+4*ks+2*t,2)}, {V(vTRW)} offset:{W13T+mat*8192+(32*ks+16*t)*128}")
    g(f"""s_waitcnt lgkmcnt(7)
v_mfma_f32_16x16x32_bf16 v[72:75], v[40:43], v[48:51], 0
s_waitcnt lgkmcnt(5)
v_mfma_f32_16x16x32_bf16 v[76:79], v[40:43], v[56:59], 0
s_waitcnt lgkmcnt(2)
v_mfma_f32_16x16x32_bf16 v[72:75], v[44:47], v[52:55], v[72:75]
s_waitcnt lgkmcnt(0)
v_mfma_f32_16x16x32_bf16 v[76:79], v[44:47], v[60:63], v[76:79]
v_and_b32 v64, 7, v0
v_lshlrev_b32 v64, 4, v64
s_nop 4
v_and_or_b32 v80, v72, s{sMASK}, {V(T0)}
v_and_or_b32 v81, v73, s{sMASK}, {V(T1)}
v_and_or_b32 v82, v76, s{sMASK}, {V(T2)}
v_and_or_b32 v83, v77, s{sMASK}, {V(T3)}""")
    g.store_sel(f"buffer_store_dwordx4 v[80:83], {V(vN16a)}, {S4(sWS)}, s{sO1} offen")
    g(f"""v_and_b32 v65, 15, v0
s_lshl_b32 s{sA}, s{sWAVE}, 4
v_add_u32 v65, s{sA}, v65
v_lshlrev_b32 v65, 1, v65
v_add_u32 v65, {HH}, v65
v_lshrrev_b32 v66, 4, v0
v_lshlrev_b32 v66, 3, v66
v_add_u32 v66, {HH}, v66
s_mov_b32 s{sB}, {LOG2E:#x}""")
    g.poll_top("h35")
    g(f"""buffer_load_dwordx4 v[48:51], v64, {S4(sWS)}, s{sF} offen sc1
buffer_load_dwordx4 v[40:43], {V(vVD)}, {S4(sWS)}, s{sO2} offen sc1
buffer_load_dwordx4 v[44:47], {V(vVD)}, {S4(sWS)}, s{sO3} offen sc1""")
    g.pad()
    g(f"""s_waitcnt vmcnt(2)
v_xor_b32 v52, s{sT}, v50
v_add_f32_dpp v48, v48, v48 quad_perm:[1,0,3,2] row_mask:0xf bank_mask:0xf
v_add_f32_dpp v49, v49, v49 quad_perm:[1,0,3,2] row_mask:0xf bank_mask:0xf
v_bitop3_b32 v52, v51, s{sT}, v52 bitop3:0xbe
v_add_f32_dpp v48, v48, v48 quad_perm:[2,3,0,1] row_mask:0xf bank_mask:0xf
v_add_f32_dpp v49, v49, v49 quad_perm:[2,3,0,1] row_mask:0xf bank_mask:0xf
v_cmp_ne_u32 s[{sC}:{sC+1}], 0, v52
v_add_f32_dpp v48, v48, v48 row_half_mirror row_mask:0xf bank_mask:0xf
v_add_f32_dpp v49, v49, v49 row_half_mirror row_mask:0xf bank_mask:0xf
v_mul_f32 v48, 0x3b000000, v48
v_mul_f32 v49, 0x3b000000, v49
v_fma_f32 v48, -v49, v49, v48
v_cvt_pk_bf16_f32 v49, 0, v49
v_max_f32 v48, 0, v48
v_cvt_pk_bf16_f32 v48, 0, v48
v_add_f32 v48, {EPS:#x}, v48
v_cvt_pk_bf16_f32 v48, 0, v48
v_sqrt_f32 v48, v48
s_waitcnt vmcnt(1)""")
    for e in range(4): g(f"v_xor_b32 {V(40+e)}, s{sTB0+e}, {V(40+e)}")
    g(f"""v_cvt_pk_bf16_f32 v48, 0, v48
v_or3_b32 {V(vAcc)}, v40, v41, v42
v_rcp_f32 v48, v48
s_waitcnt vmcnt(0)""")
    for e in range(4): g(f"v_xor_b32 {V(44+e)}, s{sTB0+e}, {V(44+e)}")
    g(f"""v_or3_b32 {V(vAcc)}, {V(vAcc)}, v43, v44
v_or3_b32 {V(vAcc)}, {V(vAcc)}, v45, v46
v_or_b32 {V(vAcc)}, {V(vAcc)}, v47
v_and_b32 {V(vAcc)}, 0xff, {V(vAcc)}
v_pk_add_f32 v[40:41], v[40:41], v[44:45]
v_pk_add_f32 v[42:43], v[42:43], v[46:47]
v_cmp_ne_u32 vcc, 0, {V(vAcc)}
s_or_b64 vcc, vcc, s[{sC}:{sC+1}]""")
    g.poll_bot("h35", "scc1")
    g.stamp(11)
    g(f"""v_fma_f32 v40, -v49, v41, v40
v_fma_f32 v42, -v49, v43, v42
s_nop 1
v_permlane32_swap_b32 v40, v42
v_add_f32 v40, v40, v42""")
    g.xrow("v_add_f32", 40, 41, 16)
    g(f"""v_mul_f32 v40, v40, v48
v_cvt_pk_bf16_f32 v40, 0, v40
v_mov_b32 v42, v40
s_nop 1
v_permlane32_swap_b32 v40, v42
v_mul_f32 v41, s{sB}, v40
v_exp_f32 v41, -v41
s_nop 0
v_add_f32 v41, 1.0, v41
v_rcp_f32 v41, v41
s_nop 0
v_mul_f32 v41, v40, v41
v_cvt_pk_bf16_f32 v41, 0, v41
v_mul_f32 v41, v41, v42
v_cvt_pk_bf16_f32 v41, 0, v41
ds_write_b16_d16_hi v65, v41
v_and_b32 v52, 15, v0
v_cmp_eq_u32 vcc, 0, v52
v_mov_b32 v52, {OOB:#x}
s_lshl_b32 s{sA}, s{sCBF}, 8
s_add_u32 s{sO1}, s{sE}, s{sA}
v_cndmask_b32 v52, v52, v0, vcc
s_waitcnt lgkmcnt(0)
s_barrier""")
    for ks in range(2):
        g(f"ds_read2_b64 {V(40+4*ks,4)}, v66 offset0:{8*ks} offset1:{8*ks+4}")
        for t in range(2):
            g(f"ds_read_b64_tr_b16 {V(56+4*ks+2*t,2)}, {V(vTRW)} offset:{W2T+(32*ks+16*t)*128}")
    g(f"""s_waitcnt lgkmcnt(3)
v_mfma_f32_16x16x32_bf16 v[72:75], v[56:59], v[40:43], 0
s_waitcnt lgkmcnt(0)
v_mfma_f32_16x16x32_bf16 v[72:75], v[60:63], v[44:47], v[72:75]
s_cmp_lg_u32 s{sCBF}, {o.final_cbf}
s_nop 6""")
    for e in range(4): g(f"v_and_or_b32 {V(80+e)}, {V(72+e)}, s{sMASK}, {V(T0+e)}")
    g(f"buffer_store_dwordx4 v[80:83], v52, {S4(sWS)}, s{sO1} offen sc1")
    g("s_cbranch_scc1 L_exit")
    g(f"""v_cmp_gt_u32 vcc, 48, v0
v_mov_b32 v52, {OOB:#x}
s_add_u32 s{sO2}, s{sE}, 4096
v_cndmask_b32 v52, v52, {V(vH3)}, vcc""")
    for e in range(4): g(f"v_cndmask_b32 {V(56+e)}, 0, {V(T0+e)}, vcc")
    gather2("h4", sE, sO2, 52, [V(56+e) for e in range(4)])
    g(f"""v_cvt_pk_bf16_f32 v40, 0, v40
v_add_f32 v40, v40, {V(vH)}
v_cvt_pk_bf16_f32 v40, 0, v40
buffer_store_short_d16_hi v40, {V(vXO)}, {S4(sOUT)}, 0 offen
s_or_b32 s{sA}, s{sRBF}, s{sWAVE}
s_cmp_lg_u32 s{sA}, 0
s_cbranch_scc1 L_exit
v_mov_b32 v41, s{sT}
v_mov_b32 v42, 0
buffer_store_dword v41, v42, {S4(sWS)}, 0 offen""")
    g("L_exit:")
    if o.stamps:
        g.stamp(12)
        g(f"""s_waitcnt lgkmcnt(0)
v_mov_b32 v1, 0""")
        for k in range(13): g(f"v_writelane_b32 v1, s{sST0+2*k}, {k}")
        g(f"""v_writelane_b32 v1, s{sCNT}, 13
s_lshl_b32 s{sA}, s2, 3
s_add_u32 s{sA}, s{sA}, s{sWAVE}
s_lshl_b32 s{sA}, s{sA}, 6
s_add_u32 s{sA}, s{sA}, {STAMPS}
v_lshlrev_b32 v2, 2, v0
v_cmp_gt_u32 vcc, 16, v0
s_and_saveexec_b64 s[{sC}:{sC+1}], vcc
buffer_store_dword v1, v2, {S4(sWS)}, s{sA} offen""")
    g("L_end:\ns_endpgm")
    L = g.L + g.tail
    if o.pads:
        i = next(k for k, x in enumerate(L) if "PADCALLS" in x)
        calls = []
        for w in range(4):
            mine = [k for k in range(g.npad) if k % 4 == w]
            calls += [f"    s_cmp_lg_u32 s{sWAVE}, {w}", f"    s_cbranch_scc1 L_pc{w}"]
            calls += [f"    s_call_b64 s[{sRET}:{sRET+1}], L_pad{k}" for k in mine]
            calls += [f"L_pc{w}:"]
        L[i:i+1] = calls
    probs = hazard.check(L)
    if probs:
        print("\n".join(probs), file=sys.stderr)
        raise SystemExit("hazards found")
    head = open("sequential_preLN__sliding_block_cached__glu_gated_swiglu__decode.s.ref").read().split("; Override launch")[0]
    src = head + f"; @launch grid=(256,1,1) block=(320,1,1) lds={LDS_END}\n"
    src += f'.amdgcn_target "amdgcn-amd-amdhsa--gfx950"\n.text\n.globl {KN}\n.p2align 8\n.type {KN},@function\n{KN}:\n'
    src += "\n".join(L) + "\n"
    src += f""".section .rodata,"a"
.p2align 6
.amdhsa_kernel {KN}
  .amdhsa_next_free_vgpr 128
  .amdhsa_next_free_sgpr 102
  .amdhsa_accum_offset 128
  .amdhsa_group_segment_fixed_size 0
  .amdhsa_kernarg_size 96
  .amdhsa_user_sgpr_count 2
  .amdhsa_user_sgpr_kernarg_segment_ptr 1
  .amdhsa_system_sgpr_workgroup_id_x 1
  .amdhsa_float_denorm_mode_32 3
.end_amdhsa_kernel
"""
    return src

def parse(argv=None):
    ap = argparse.ArgumentParser()
    ap.add_argument("-o", default="k.s")
    ap.add_argument("--stamps", type=int, default=0)
    ap.add_argument("--pads", type=int, default=0)
    ap.add_argument("--nt", type=int, default=1)
    ap.add_argument("--b0", type=int, default=1)
    ap.add_argument("--window", type=int, default=5)
    ap.add_argument("--w2when", default="w13")
    ap.add_argument("--limit", type=int, default=20000)
    ap.add_argument("--final_cbf", type=int, default=0)
    ap.add_argument("--force_slow", type=int, default=0)
    return ap.parse_args(argv)

if __name__ == "__main__":
    o = parse()
    open(o.o, "w").write(gen(o))
```
